```python
import torch

def _softmax(x, axis=-1):
    return torch.softmax(x, dim=axis)
def _gelu(x):
    return torch.nn.functional.gelu(x, approximate="tanh")
def _silu(x):
    return torch.nn.functional.silu(x)
def _sigmoid(x):
    return torch.sigmoid(x)
def _layernorm(x, axis=-1, eps=1e-5):
    m = x.mean(dim=axis, keepdim=True)
    v = x.var(dim=axis, keepdim=True, unbiased=False)
    return (x - m) / torch.sqrt(v + eps)
def _scatter_add(tgt, idx, src, axis=0):
    return tgt.clone().index_add_(axis, idx, src)
def _segment_sum(src, seg, n):
    out = torch.zeros((n,) + src.shape[1:], dtype=src.dtype)
    return out.index_add_(0, seg, src)
def _pad(x, pw):
    flat = tuple(v for pair in reversed(pw) for v in pair)
    return torch.nn.functional.pad(x, flat)

kernel_name = 'concat_heads__compressed_kv_cla__sliding_block__prompt'

def setup_inputs():

    _w = (lambda a: (lambda t: t.to(torch.bfloat16) if t.is_floating_point() else t)(torch.as_tensor(a)))
    def _A_setup():
        B, H, Sq, Sk, D, M = 1, 32, 2048, 2048, 128, 512
        Dc = 4 * D
        return {
            "x": _w((lambda *s: torch.randn(*s, dtype=torch.bfloat16) * 0.2)(B, Sq, M)),
            "c_kv": _w((lambda *s: torch.randn(*s, dtype=torch.bfloat16) * 1.6)(B, Sk, Dc)),
            "w_q": _w((lambda *s: torch.randn(*s, dtype=torch.bfloat16) * 3.2)(M, H, D) * (M ** -0.5)),
            "w_uk": _w((lambda *s: torch.randn(*s, dtype=torch.bfloat16) * 3.2)(Dc, H, D) * (Dc ** -0.5)),
            "w_uv": _w((lambda *s: torch.randn(*s, dtype=torch.bfloat16) * 1.6)(Dc, H, D) * (Dc ** -0.5)),
            "w_o": _w((lambda *s: torch.randn(*s, dtype=torch.bfloat16) * 1.6)(H, D, M) * ((H * D) ** -0.5)),
        }
    _A_in = _A_setup()

    def _B_setup():
        B, S, D = 1, 2048, 512
        return {
            "x": _w((lambda *s: torch.randn(*s, dtype=torch.bfloat16) * 0.4)(B, S, D)),
            "wqkv": _w((lambda *s: torch.randn(*s, dtype=torch.bfloat16) * 0.4)(D, 3 * D)),
            "wo": _w((lambda *s: torch.randn(*s, dtype=torch.bfloat16) * 0.05)(D, D)),
        }
    _B_in = _B_setup()

    return {
        "A_x": _A_in["x"],
        "A_c_kv": _A_in["c_kv"],
        "A_w_q": _A_in["w_q"],
        "A_w_uk": _A_in["w_uk"],
        "A_w_uv": _A_in["w_uv"],
        "A_w_o": _A_in["w_o"],
        "B_x": _B_in["x"],
        "B_wqkv": _B_in["wqkv"],
        "B_wo": _B_in["wo"],
    }

def reference(A_x, A_c_kv, A_w_q, A_w_uk, A_w_uv, A_w_o, B_x, B_wqkv, B_wo):
    def _A_ref(x, c_kv, w_q, w_uk, w_uv, w_o):
        B, Sq, M = x.shape[0], x.shape[1], x.shape[2]
        Sk = c_kv.shape[1]
        H, D = w_q.shape[1], w_q.shape[2]
        q = torch.einsum("bqm,mhd->bhqd", x, w_q)
        k = torch.einsum("bkc,chd->bhkd", c_kv, w_uk)
        v = torch.einsum("bkc,chd->bhkd", c_kv, w_uv)
        scores = torch.einsum("bhqd,bhkd->bhqk", q, k) * (D ** -0.5)
        off = Sk - Sq
        qi = torch.arange(Sq)[:, None]
        kj = torch.arange(Sk)[None, :]
        cmask = kj <= (qi + off)
        scores = torch.where(cmask[None, None], scores, -1e9)
        p = _softmax(scores, axis=-1)
        ctx = torch.einsum("bhqk,bhkd->bhqd", p, v)
        return torch.einsum("bhqd,hdm->bqm", ctx, w_o)

    def _B_ref(x, wqkv, wo):
        B, S, D = x.shape
        H = 32; Dh = D // H; W = 256
        qkv = (lambda x, *d: x.permute(*d))((x @ wqkv).reshape(B, S, 3, H, Dh), 2, 0, 3, 1, 4)
        q, k, v = qkv[0], qkv[1], qkv[2]
        scores = torch.einsum("bhqd,bhkd->bhqk", q, k) * (Dh ** -0.5)
        idx = torch.arange(S)
        mask = (idx[:, None] - idx[None, :] >= 0) & (idx[:, None] - idx[None, :] < W)
        scores = torch.where(mask[None, None], scores, -1e9)
        p = _softmax(scores, axis=-1)
        o = torch.einsum("bhqk,bhkd->bhqd", p, v)
        return (lambda x, *d: x.permute(*d))(o, 0, 2, 1, 3).reshape(B, S, D) @ wo

    a = _A_ref(A_x, A_c_kv, A_w_q, A_w_uk, A_w_uv, A_w_o)
    b = _B_ref(B_x, B_wqkv, B_wo)
    return torch.concatenate([a, b], axis=-1)
```

```python
class Asm:
    def __init__(self):
        self.lines = []
        self._lab = 0
    def __call__(self, s):
        if isinstance(s, (list, tuple)):
            for x in s: self(x)
        else:
            self.lines.append("    " + s)
    def label(self, name):
        self.lines.append(name + ":")
    def newlabel(self, base="L"):
        self._lab += 1
        return f"{base}_{self._lab}"
    def raw(self, s):
        self.lines.append(s)
    def text(self):
        return "\n".join(self.lines) + "\n"

def vr(base, n=1, kind="v"):
    return f"{kind}{base}" if n == 1 else f"{kind}[{base}:{base+n-1}]"
def sr(base, n=1):
    return f"s{base}" if n == 1 else f"s[{base}:{base+n-1}]"

def cost(ins):
    op = ins.split()[0]
    if op.startswith("v_exp") or op.startswith("v_rcp") or op.startswith("v_log"): return 2.0
    if op.startswith("s_"): return 0.5
    return 1.0

def weave(mfmas, fillers, lead=0.0):
    out = []
    n = len(mfmas)
    tot = sum(cost(f) for f in fillers) + sum(cost(p) for _, ps in mfmas for p in ps)
    per = tot / n
    fi = 0; acc = 0.0
    for i, (m, ps) in enumerate(mfmas):
        if isinstance(m, (list, tuple)): out.extend(m)
        else: out.append(m)
        for p in ps:
            out.append(p); acc += cost(p)
        target = per * (i + 1) + lead
        while fi < len(fillers) and (acc + cost(fillers[fi]) / 2 <= target or i == n - 1):
            out.append(fillers[fi]); acc += cost(fillers[fi]); fi += 1
    return out

def kernel_header(name):
    return f".globl {name}\n.p2align 8\n.type {name},@function\n{name}:"

def kernel_desc(name, vgpr, accum, sgpr=102):
    return f""".amdhsa_kernel {name}
  .amdhsa_next_free_vgpr {vgpr}
  .amdhsa_next_free_sgpr {sgpr}
  .amdhsa_accum_offset {accum}
  .amdhsa_group_segment_fixed_size 0
  .amdhsa_kernarg_size 96
  .amdhsa_user_sgpr_count 2
  .amdhsa_user_sgpr_kernarg_segment_ptr 1
  .amdhsa_system_sgpr_workgroup_id_x 1
.end_amdhsa_kernel"""
```

```python
import sys, math
from asmlib import *

NAME = "concat_heads__compressed_kv_cla__sliding_block__prompt"
MB = 1 << 20
WS_KF = 0
WS_VF = 16 * MB
WS_CTX = 32 * MB
WS_CTXB = 48 * MB
WS_WOF = 50 * MB
WS_WOBF = 54 * MB
WS_BQ = 55 * MB
WS_BK = 57 * MB
WS_BV = 59 * MB
WS_END = 61 * MB

MF = "v_mfma_f32_16x16x32_bf16"
MF16 = "v_mfma_f32_16x16x16_bf16"
import struct
def f32bits(x): return struct.unpack("<I", struct.pack("<f", x))[0]
QSCALE = 1.4426950408889634 * (128 ** -0.5)
BSCALE = 1.4426950408889634 * 0.25
NEGBIG = 0xf149f2ca

STAMPS = False
EXP = set()
WS_DBG = 62 * MB
def stamp(a, i):
    if STAMPS:
        a(f"s_memrealtime s[{64+2*i}:{65+2*i}]"); a(f"s_memtime s[{80+2*i}:{81+2*i}]")
def stamp_dump(a, n, sws, wavereg, slot=0):
    if not STAMPS: return
    a("s_waitcnt vmcnt(0) lgkmcnt(0)")
    a(f"s_mov_b32 s{sws+2}, {WS_DBG + (slot+1)*MB:#x}")
    a(f"s_lshl_b32 s62, s2, 3"); a(f"s_add_u32 s62, s62, s{wavereg}"); a("s_lshl_b32 s62, s62, 6"); a(f"s_add_u32 s62, s62, {WS_DBG + slot*MB}")
    a("v_mov_b32 v1, 0")
    for i in range(n):
        a(f"v_mov_b32 v2, s{64+2*i}"); a(f"v_mov_b32 v3, s{80+2*i}")
        a(f"buffer_store_dwordx2 v[2:3], v1, s[{sws}:{sws+3}], s62 offen offset:{8*i}")
        a("s_nop 1")

class VM:
    def __init__(self, a): self.a = a; self.q = []
    def issue(self, tag): self.q.append(tag)
    def count_for(self, tags):
        idx = max((i for i, t in enumerate(self.q) if t in tags), default=-1)
        return len(self.q) - 1 - idx if idx >= 0 else None
    def wait(self, tags):
        n = self.count_for(tags)
        if n is None: return []
        assert n <= 63
        self.q = self.q[len(self.q) - n:] if n else []
        return [f"s_waitcnt vmcnt({n})"]

def srd(a, d, lo, hi, size):
    a(f"s_mov_b32 s{d}, s{lo}"); a(f"s_mov_b32 s{d+1}, s{hi}")
    a(f"s_mov_b32 s{d+2}, {size:#x}"); a(f"s_mov_b32 s{d+3}, 0x20000")

def dma(m0base, m0const, voff, srd_, soff):
    setup, sreg = soff
    return [f"s_add_u32 m0, s{m0base}, {m0const}"] + setup + ([] if setup else ["s_nop 0"]) + \
           [f"buffer_load_dwordx4 v{voff}, s[{srd_}:{srd_+3}], {sreg} offen lds"]

def spread(groups, items, start=0, end=None):
    end = len(groups) if end is None else end
    n = end - start
    for i, it in enumerate(items):
        g = start + (i * n) // max(len(items), 1)
        groups[g].extend(it)

def gen_k1(a, name):
    a.raw(kernel_header(name))
    END = f"{name}_end"
    a("s_cmp_ge_u32 s2, 256"); a(f"s_cbranch_scc1 {END}")
    stamp(a, 0)
    a("s_load_dwordx2 s[4:5], s[0:1], 8")
    a("s_load_dwordx4 s[8:11], s[0:1], 24")
    a("s_load_dwordx2 s[6:7], s[0:1], 88")
    a("s_load_dwordx4 s[52:55], s[0:1], 40")
    a("s_load_dwordx4 s[56:59], s[0:1], 56")
    a("v_lshrrev_b32 v1, 6, v0"); a("v_and_b32 v0, 63, v0")
    a("v_readfirstlane_b32 s40, v1")
    a("s_and_b32 s41, s2, 7"); a("s_lshl_b32 s41, s41, 2"); a("s_bfe_u32 s42, s2, 0x20003"); a("s_add_u32 s41, s41, s42")
    a("s_lshr_b32 s42, s2, 5")
    a("s_lshl_b32 s43, s40, 10")
    a("s_waitcnt lgkmcnt(0)")
    SC, SWK, SWV, SWS = 16, 20, 24, 28
    srd(a, SC, 4, 5, 2 * MB); srd(a, SWK, 8, 9, 4 * MB); srd(a, SWV, 10, 11, 4 * MB); srd(a, SWS, 6, 7, WS_END)
    VCOFF, VWOFF, VST = 2, 3, 4
    CA = [5, 6]; CA2 = [7, 8]; WA = [9, 10]
    a("v_lshrrev_b32 v11, 4, v0")
    a("s_and_b32 s44, s40, 1"); a("s_lshl_b32 s44, s44, 2")
    a("v_add_u32 v12, s44, v11")
    a("v_and_b32 v13, 7, v0"); a("v_xor_b32 v12, v12, v13"); a("v_lshlrev_b32 v12, 4, v12")
    a("v_lshrrev_b32 v13, 3, v0"); a("v_lshlrev_b32 v13, 10, v13")
    a("v_add_u32 v12, v12, v13"); a("s_lshl_b32 s44, s40, 13"); a(f"v_add_u32 v{VCOFF}, s44, v12")
    a("s_bfe_u32 s44, s40, 0x10001"); a("s_lshl_b32 s44, s44, 2")
    a("v_or_b32 v12, s44, v11"); a("v_lshlrev_b32 v12, 1, v12")
    a("v_and_b32 v13, 15, v0"); a("v_xor_b32 v12, v12, v13"); a("v_lshlrev_b32 v12, 4, v12")
    a("s_lshl_b32 s44, s40, 2"); a("v_add_u32 v14, s44, v11"); a("v_lshlrev_b32 v14, 13, v14")
    a("v_add_u32 v12, v12, v14"); a("s_lshl_b32 s44, s41, 8"); a(f"v_add_u32 v{VWOFF}, s44, v12")
    vm = VM(a)
    a("s_lshl_b32 s45, s42, 18")
    def c_dma(stage):
        r = []
        for m in range(4):
            r.append(dma(43, (stage % 3) * 32768 + m * 8192, VCOFF, SC, ([f"s_add_u32 s46, s45, {m*65536 + stage*128}"], "s46")))
        return r
    def w_dma(half):
        r = []
        for isv in range(2):
            r.append(dma(43, 98304 + (half % 4) * 16384 + isv * 8192, VWOFF, SWV if isv else SWK, ([f"s_mov_b32 s46, {half*262144}"], "s46")))
        return r
    def emit_dma(lst, tag):
        for it in lst: a(it); vm.issue(tag)
    emit_dma(c_dma(0), "c0"); emit_dma(w_dma(0), "w0"); emit_dma(w_dma(1), "w1"); emit_dma(c_dma(1), "c1")
    emit_dma(w_dma(2), "w2"); emit_dma(w_dma(3), "w3"); emit_dma(c_dma(2), "c2")
    a("v_and_b32 v13, 15, v0")
    a("s_lshr_b32 s44, s40, 2"); a("s_lshl_b32 s44, s44, 7")
    a("v_add_u32 v12, s44, v13"); a("v_lshlrev_b32 v12, 7, v12")
    a("v_lshrrev_b32 v14, 1, v13"); a("v_xor_b32 v14, v14, v11"); a("v_lshlrev_b32 v14, 4, v14")
    a(f"v_add_u32 v{CA[0]}, v12, v14"); a(f"v_xor_b32 v{CA[1]}, 64, v{CA[0]}")
    a(f"v_add_u32 v{CA2[0]}, 0x10000, v{CA[0]}"); a(f"v_add_u32 v{CA2[1]}, 0x10000, v{CA[1]}")
    a("v_lshrrev_b32 v14, 2, v13")
    a("v_lshlrev_b32 v12, 3, v11"); a("v_add_u32 v12, v12, v14"); a("v_lshlrev_b32 v12, 8, v12")
    a("v_and_b32 v15, 1, v11"); a("v_lshlrev_b32 v15, 2, v15"); a("v_or_b32 v14, v14, v15")
    a("s_and_b32 s44, s40, 3"); a("s_lshl_b32 s44, s44, 1")
    a("v_xor_b32 v14, s44, v14"); a("v_lshlrev_b32 v14, 5, v14")
    a("v_and_b32 v15, 3, v0"); a("v_lshlrev_b32 v15, 3, v15")
    a("v_add3_u32 v12, v12, v14, v15"); a(f"v_add_u32 v{WA[0]}, 98304, v12"); a(f"v_xor_b32 v{WA[1]}, 32, v{WA[0]}")
    a(f"v_lshlrev_b32 v{VST}, 4, v0")
    CF, WF, ACC = 32, 64, 128
    def cread(n, kg):
        st = n // 2; sl = st % 3; ks = n & 1
        reg = CA2[ks] if sl == 2 else CA[ks]; off = (0 if sl == 2 else sl * 32768) + kg * 2048
        return f"ds_read_b128 {vr(CF+4*kg,4)}, v{reg} offset:{off}"
    def wread(n, i):
        isv, p, sec = i >> 2, (i >> 1) & 1, i & 1
        dst = WF + 16 * (n & 1) + 8 * isv + 4 * p + 2 * sec
        return f"ds_read_b64_tr_b16 {vr(dst,2)}, v{WA[p]} offset:{(n%4)*16384 + isv*8192 + sec*1024}"
    a(vm.wait({"c0", "w0"})); a("s_barrier")
    stamp(a, 1)
    for i in range(8): a(wread(0, i))
    for kg in range(8): a(cread(0, kg))
    for n in range(16):
        wb = WF + 16 * (n & 1)
        groups = [[] for _ in range(8)]
        last = (n == 15)
        if not last:
            groups[0] += vm.wait({f"w{n+1}", f"c{(n+1)//2}"}) + ["s_barrier"]
            for kg in range(8):
                groups[kg].append(cread(n + 1, kg))
                if kg < 4: groups[kg] += [wread(n + 1, 2 * kg), wread(n + 1, 2 * kg + 1)]
            items = []
            if n + 4 <= 15: items += [(it, f"w{n+4}") for it in w_dma(n + 4)]
            if n % 2 == 0 and n >= 2 and n // 2 + 2 <= 7: items += [(it, f"c{n//2+2}") for it in c_dma(n // 2 + 2)]
            for it, tag in items: vm.issue(tag)
            spread(groups, [it for it, _ in items], 2, 8)
        for kg in range(8):
            if kg == 0: a("s_waitcnt lgkmcnt(4)")
            if kg == 4: a("s_waitcnt lgkmcnt(12)" if not last else "s_waitcnt lgkmcnt(0)")
            ms = []
            for d in range(2):
                acc = vr(ACC + kg * 16 + d * 4, 4)
                ms.append(f"{MF} {acc}, {vr(wb+4*d,4)}, {vr(CF+4*kg,4)}, {'0' if n == 0 else acc}")
            for d in range(2):
                acc = vr(ACC + kg * 16 + 8 + d * 4, 4)
                ms.append(f"{MF} {acc}, {vr(CF+4*kg,4)}, {vr(wb+8+4*d,4)}, {'0' if n == 0 else acc}")
            a(ms); a(groups[kg])
    stamp(a, 2)
    srd(a, SC, 54, 55, 2 * MB); srd(a, SWK, 56, 57, 512 * 3072)
    a("s_and_b32 s50, s2, 15"); a("s_lshr_b32 s51, s2, 4")
    a("v_lshrrev_b32 v12, 5, v0"); a("v_lshlrev_b32 v12, 1, v12"); a("v_and_b32 v13, 3, v0"); a("v_xor_b32 v12, v12, v13"); a("v_lshlrev_b32 v12, 4, v12")
    a("v_lshrrev_b32 v13, 2, v0"); a("s_lshl_b32 s44, s40, 4"); a("v_add_u32 v13, s44, v13"); a("v_mul_u32_u24 v13, 3072, v13")
    a("s_lshl_b32 s44, s50, 6"); a(f"v_add3_u32 v{VWOFF}, v12, v13, s44")
    a("s_lshl_b32 s45, s51, 17")
    a("s_barrier")
    def bw_dma(c):
        return [dma(43, seg * 32768 + c * 8192, VWOFF, SWK, ([f"s_mov_b32 s46, {c*128*3072 + seg*1024}"], "s46")) for seg in range(3)]
    def bx_dma(st):
        return [dma(43, 98304 + (st % 4) * 16384 + m * 8192, VCOFF, SC, ([f"s_add_u32 s46, s45, {m*65536 + st*128}"], "s46")) for m in range(2)]
    emit_dma(bw_dma(0), "bw0"); emit_dma(bx_dma(0), "bx0"); emit_dma(bx_dma(1), "bx1"); emit_dma(bw_dma(1), "bw1")
    emit_dma(bx_dma(2), "bx2"); emit_dma(bx_dma(3), "bx3"); emit_dma(bw_dma(2), "bw2"); emit_dma(bw_dma(3), "bw3")
    a("s_lshl_b32 s44, s41, 6"); a("s_lshl_b32 s46, s42, 3"); a("s_add_u32 s44, s44, s46")
    a("s_lshr_b32 s46, s40, 2"); a("s_lshl_b32 s46, s46, 2"); a("s_add_u32 s44, s44, s46"); a("s_lshl_b32 s44, s44, 13")
    a("s_and_b32 s46, s40, 3"); a("s_lshl_b32 s47, s46, 10"); a("s_add_u32 s47, s47, s44")
    a("s_lshl_b32 s48, s46, 11"); a("s_add_u32 s48, s48, s44"); a(f"s_add_u32 s48, s48, {WS_VF}")
    a("s_nop 3")
    T = 32
    for kg in range(8):
        t = T + 4 * kg
        for d in range(2):
            b = ACC + kg * 16 + d * 4
            a(f"v_cvt_pk_bf16_f32 v{t+2*d}, v{b}, v{b+1}"); a(f"v_cvt_pk_bf16_f32 v{t+2*d+1}, v{b+2}, v{b+3}")
        a(f"s_add_u32 s46, s47, {(kg>>1)*8192 + (kg&1)*4096}")
        a(f"buffer_store_dwordx4 {vr(t,4)}, v{VST}, s[{SWS}:{SWS+3}], s46 offen"); vm.issue("st")
    for tt in range(4):
        for d in range(2):
            t = T + 32 + 8 * tt + 4 * d
            for e in range(2):
                b = ACC + (2 * tt + e) * 16 + 8 + d * 4
                a(f"v_cvt_pk_bf16_f32 v{t+2*e}, v{b}, v{b+1}"); a(f"v_cvt_pk_bf16_f32 v{t+2*e+1}, v{b+2}, v{b+3}")
            if d == 0: a(f"s_add_u32 s46, s48, {tt*8192}")
            a(f"buffer_store_dwordx4 {vr(t,4)}, v{VST}, s[{SWS}:{SWS+3}], s46 offen offset:{d*1024}"); vm.issue("st")
    stamp(a, 3)
    srd(a, SWV, 52, 53, 4 * MB)
    WP = 96
    a("v_lshlrev_b32 v12, 12, v11"); a("v_and_b32 v13, 15, v0"); a("v_lshl_add_u32 v16, v13, 1, v12")
    a("s_lshr_b32 s44, s2, 1"); a("s_lshl_b32 s44, s44, 15"); a("s_and_b32 s46, s2, 1"); a("s_lshl_b32 s46, s46, 9"); a("s_add_u32 s44, s44, s46")
    a("s_lshl_b32 s46, s40, 6"); a("s_add_u32 s44, s44, s46"); a("s_add_u32 s46, s44, 16384")
    for fr in range(2):
        for j in range(8):
            a(f"buffer_load_ushort v{WP+12*(j&1)+4*fr+j//2}, v16, s[{SWV}:{SWV+3}], {'s46' if j >= 4 else 's44'} offen offset:{(j&3)*1024 + fr*32}"); vm.issue("wp")
    srd(a, SWV, 58, 59, 512 * 1024)
    a("s_lshr_b32 s44, s2, 4"); a("s_lshl_b32 s44, s44, 15"); a("s_and_b32 s46, s2, 15"); a("s_lshl_b32 s46, s46, 6"); a("s_add_u32 s44, s44, s46")
    a("s_and_b32 s46, s40, 1"); a("s_lshl_b32 s46, s46, 5"); a("s_add_u32 s44, s44, s46"); a("s_add_u32 s46, s44, 16384")
    for j in range(8):
        a(f"buffer_load_ushort v{WP+12*(j&1)+8+j//2}, v16, s[{SWV}:{SWV+3}], {'s46' if j >= 4 else 's44'} offen offset:{(j&3)*1024}"); vm.issue("wp")
    BXA = [5, 6]; BWA = [7, 8]
    a("v_and_b32 v13, 15, v0"); a("s_and_b32 s44, s40, 3"); a("s_lshl_b32 s44, s44, 5")
    a("v_add_u32 v12, s44, v13"); a("v_lshlrev_b32 v12, 7, v12")
    a("v_lshrrev_b32 v14, 1, v13"); a("v_xor_b32 v14, v14, v11"); a("v_lshlrev_b32 v14, 4, v14")
    a("v_add_u32 v12, v12, v14"); a(f"v_add_u32 v{BXA[0]}, 98304, v12"); a(f"v_xor_b32 v{BXA[1]}, 64, v{BXA[0]}")
    a("v_lshrrev_b32 v14, 2, v13"); a("v_lshl_add_u32 v12, v11, 3, v14"); a("v_lshlrev_b32 v12, 6, v12")
    a("s_lshr_b32 s44, s40, 2"); a("v_and_b32 v14, 1, v11"); a("v_xor_b32 v14, s44, v14"); a("v_lshlrev_b32 v14, 5, v14")
    a("v_and_b32 v15, 3, v0"); a("v_lshlrev_b32 v15, 3, v15")
    a(f"v_add3_u32 v{BWA[0]}, v12, v14, v15"); a(f"v_add_u32 v{BWA[1]}, 0x10000, v{BWA[0]}")
    BF, BACC = 128, 176
    def breads(n):
        b = BF + 20 * (n & 1); r = []
        for tg in range(2): r.append(f"ds_read_b128 {vr(b+4*tg,4)}, v{BXA[n&1]} offset:{((n//2)%4)*16384 + tg*2048}")
        for seg in range(3):
            for sec in range(2):
                r.append(f"ds_read_b64_tr_b16 {vr(b+8+4*seg+2*sec,2)}, v{BWA[seg//2]} offset:{(seg&1)*32768 + n*2048 + sec*256}")
        return r
    a(vm.wait({"bw0", "bx0"})); a("s_barrier")
    a(breads(0))
    for n in range(16):
        b = BF + 20 * (n & 1)
        a("s_waitcnt lgkmcnt(0)")
        post = []
        if n < 15:
            if n & 1:
                st = (n + 1) // 2
                a(vm.wait({f"bx{st}", f"bw{st//2}"})); a("s_barrier")
                if st + 3 <= 7:
                    for it in bx_dma(st + 3): post.append(it); vm.issue(f"bx{st+3}")
            rd = breads(n + 1)
        else: rd = []
        ms = []
        for seg in range(3):
            for tg in range(2):
                acc = vr(BACC + (seg * 2 + tg) * 4, 4); x_, w_ = vr(b + 4 * tg, 4), vr(b + 8 + 4 * seg, 4)
                ms.append(f"{MF} {acc}, {w_ if seg < 2 else x_}, {x_ if seg < 2 else w_}, {'0' if n == 0 else acc}")
        for i, m in enumerate(ms):
            a(m)
            a(rd[i:i + 1] if i < 4 else rd[4 + 2 * (i - 4): 6 + 2 * (i - 4)])
            if i < len(post): a(post[i])
    a(vm.wait({"wp"}))
    for i in range(12): a(f"v_lshl_or_b32 v{WP+i}, v{WP+12+i}, 16, v{WP+i}")
    a("s_and_b32 s44, s2, 1"); a("s_lshl_b32 s44, s44, 4"); a("s_lshl_b32 s46, s40, 1"); a("s_add_u32 s44, s44, s46"); a("s_lshl_b32 s44, s44, 17")
    a("s_lshr_b32 s46, s2, 1"); a("s_lshl_b32 s46, s46, 10"); a("s_add_u32 s44, s44, s46"); a(f"s_add_u32 s44, s44, {WS_WOF}"); a(f"s_add_u32 s46, s44, {128*1024}")
    a(f"buffer_store_dwordx4 {vr(WP,4)}, v{VST}, s[{SWS}:{SWS+3}], s44 offen")
    a(f"buffer_store_dwordx4 {vr(WP+4,4)}, v{VST}, s[{SWS}:{SWS+3}], s46 offen")
    a("s_cmp_ge_u32 s40, 2"); a(f"s_cbranch_scc1 {name}_nowb")
    a("s_and_b32 s44, s2, 15"); a("s_lshl_b32 s44, s44, 1"); a("s_add_u32 s44, s44, s40"); a("s_lshl_b32 s44, s44, 14")
    a("s_lshr_b32 s46, s2, 4"); a("s_lshl_b32 s46, s46, 10"); a("s_add_u32 s44, s44, s46"); a(f"s_add_u32 s44, s44, {WS_WOBF}")
    a(f"buffer_store_dwordx4 {vr(WP+8,4)}, v{VST}, s[{SWS}:{SWS+3}], s44 offen")
    a.label(f"{name}_nowb")
    a("s_lshl_b32 s44, s50, 1"); a("s_lshr_b32 s46, s40, 2"); a("s_add_u32 s44, s44, s46"); a("s_lshl_b32 s44, s44, 6")
    a("s_lshl_b32 s46, s51, 2"); a("s_add_u32 s44, s44, s46"); a("s_and_b32 s46, s40, 3"); a("s_add_u32 s44, s44, s46"); a("s_lshl_b32 s44, s44, 10")
    a(f"s_mov_b32 s47, {f32bits(BSCALE):#x}")
    for i in range(8): a(f"v_mul_f32 v{BACC+i}, s47, v{BACC+i}")
    for seg in range(3):
        t = 32 + 4 * seg
        for i in range(4): a(f"v_cvt_pk_bf16_f32 v{t+i}, v{BACC+seg*8+2*i}, v{BACC+seg*8+2*i+1}")
        a(f"s_add_u32 s46, s44, {[WS_BQ, WS_BK, WS_BV][seg]}")
        a(f"buffer_store_dwordx4 {vr(t,4)}, v{VST}, s[{SWS}:{SWS+3}], s46 offen")
    stamp(a, 4)
    if STAMPS: a("s_waitcnt vmcnt(0)")
    stamp(a, 5)
    stamp_dump(a, 6, SWS, 40)
    a.label(END)
    a("s_endpgm")


class R2:
    LANE16, KADDR, VADDR, LANEK, DQ, T0 = 1, 2, 3, 4, 5, 6
    ONES, L, C, P, S, KF, VF, Q, O = 12, 16, 24, 40, 56, 88, 120, 152, 184

def attn_step(par, qk=True, sm=True, pv=True, extra=None, head=None):
    R = R2
    Sc = R.S + 16 * par; Sn = R.S + 16 * (par ^ 1)
    Pc = R.P + 8 * par; Pp = R.P + 8 * (par ^ 1)
    off = 8192 * par
    mf = []; gaps = []
    if qk:
        for kg in range(2):
            for qg in range(2):
                for ds in range(4):
                    s_ = vr(Sn + qg * 8 + kg * 4, 4)
                    c = vr(R.C + (kg * 2 + qg) * 4, 4) if ds == 0 else s_
                    mf.append(f"{MF} {s_}, {vr(R.KF+(kg*4+ds)*4,4)}, {vr(R.Q+(qg*4+ds)*4,4)}, {c}")
                    gaps.append([f"ds_read_b128 {vr(R.KF+(kg*4+ds)*4,4)}, v{R.KADDR} offset:{off+(kg*4+ds)*1024}"] if qg == 1 else [])
    nqk = len(mf)
    if pv:
        for dt in range(8):
            for qg in range(2):
                o = vr(R.O + (dt * 2 + qg) * 4, 4)
                mf.append(f"{MF} {o}, {vr(R.VF+dt*4,4)}, {vr(Pp+qg*4,4)}, {o}")
                gaps.append([f"ds_read_b128 {vr(R.VF+dt*4,4)}, v{R.VADDR} offset:{off+dt*1024}"] if (qg == 1 and sm) else [])
        for qg in range(2):
            l = vr(R.L + qg * 4, 4)
            mf.append(f"{MF} {l}, {vr(R.ONES,4)}, {vr(Pp+qg*4,4)}, {l}"); gaps.append([])
    ex = lambda i: f"v_exp_f32 v{Sc+i}, v{Sc+i}"
    cv = lambda p: f"v_cvt_pk_bf16_f32 v{Pc+p}, v{Sc+2*p}, v{Sc+2*p+1}"
    free = []
    if qk and pv and sm:
        for i, g in enumerate([0, 1, 2, 3, 8, 9, 10, 11, 16, 18, 20, 22, 24, 26, 28, 30]): gaps[g].append(ex(i))
        for p, g in enumerate([4, 5, 12, 13, 19, 23, 27, 31]): gaps[g].append(cv(p))
        free = [6, 7, 14, 17, 21, 25, 29, 32, 33, 15]
    elif qk and sm:
        for i in range(16): gaps[i].append(ex(i))
        for p in range(7): gaps[2 * p + 3].append(cv(p))
        for dt in range(8): gaps[15].append(f"ds_read_b128 {vr(R.VF+dt*4,4)}, v{R.VADDR} offset:{off+dt*1024}")
        gaps[15] += [cv(7)]
        free = list(range(16))
    elif sm and pv:
        for i in range(16): gaps[i].append(ex(i))
        for p in range(8): gaps[2 * p + 3].append(cv(p))
        free = list(range(18))
    else:
        free = list(range(len(mf)))
    if extra:
        for i, it in enumerate(extra): gaps[free[i % len(free)]].extend(it)
    out = []
    for i, m in enumerate(mf):
        if i == 0 and qk: out.append("s_waitcnt lgkmcnt(8)" if pv else "s_waitcnt lgkmcnt(0)")
        if i == nqk and pv:
            out.append("s_waitcnt lgkmcnt(8)" if qk else "s_waitcnt lgkmcnt(0)")
            if not qk and not sm: out.append("s_nop 1")
        out.append(m)
        if i == 0 and head: out.extend(head)
        out.extend(gaps[i])
    return out

def gen_battn(a, name, SWS, vm, after_loads):
    R = R2
    L = lambda s: f"{name}_{s}"
    BQ, BK, BV, S, CD, CE, CN, P, O, LL, M = 252 - 4, 88, 124, 160, 192, 208, 224, 232, 240, 16, 24
    BQ = 28
    a("s_and_b32 s60, s2, 31"); a("s_lshr_b32 s61, s2, 5"); a("s_lshl_b32 s61, s61, 3"); a("s_add_u32 s61, s61, s40")
    a("s_lshl_b32 s44, s60, 6"); a("s_add_u32 s44, s44, s61"); a("s_lshl_b32 s44, s44, 10")
    a(f"s_add_u32 s46, s44, {WS_BQ}")
    a(f"buffer_load_dwordx4 {vr(BQ,4)}, v{R.LANE16}, s[{SWS}:{SWS+3}], s46 offen"); vm.issue("b")
    for (reg, base) in ((BK, WS_BK), (BV, WS_BV)):
        for j in range(8, -1, -1):
            if j in (8, 7, 3): a(f"s_add_u32 s46, s44, {base - 8192 + (j & ~3) * 1024}")
            a(f"buffer_load_dwordx4 {vr(reg+4*j,4)}, v{R.LANE16}, s[{SWS}:{SWS+3}], s46 offen offset:{(j&3)*1024}"); vm.issue("b" + ("k" if reg == BK else "v") + str(j))
    after_loads()
    a(f"v_mov_b32 v{R.T0}, {NEGBIG:#x}")
    for j in range(4):
        a(f"v_cmp_gt_i32 vcc, {j}, v{R.DQ}")
        a(f"v_mov_b32 v{CD+4+j}, 0"); a(f"v_mov_b32 v{CD+8+j}, v{R.T0}"); a(f"v_mov_b32 v{CE+4+j}, v{R.T0}"); a(f"v_mov_b32 v{CE+8+j}, 0")
        a(f"v_cndmask_b32 v{CD+j}, 0, v{R.T0}, vcc"); a(f"v_cndmask_b32 v{CD+12+j}, 0, v{R.T0}, vcc")
        a(f"v_cndmask_b32 v{CE+j}, v{R.T0}, v{CD+4}, vcc"); a(f"v_cndmask_b32 v{CE+12+j}, v{R.T0}, v{CD+4}, vcc")
    for i in range(4): a(f"v_mov_b32 v{R.ONES+i}, 0x3f803f80")
    for i in range(8): a(f"v_mov_b32 v{O+i}, 0"); a(f"v_mov_b32 v{LL+i}, 0")
    a(f"v_mov_b32 v{M}, v{R.T0}"); a(f"v_mov_b32 v{M+1}, v{R.T0}")
    def qk(j, cmid):
        r = []
        for kg in range(2):
            for qg in range(2):
                c = vr(CD + (kg * 2 + qg) * 4, 4) if j == 8 else vr(CE + (kg * 2 + qg) * 4, 4) if j == 0 else cmid(qg)
                r.append(f"{MF16} {vr(S+16*(j&1)+qg*8+kg*4,4)}, {vr(BK+4*j+2*kg,2)}, {vr(BQ+2*qg,2)}, {c}")
        return r
    def mx(j):
        s_ = S + 16 * (j & 1)
        return [f"v_max3_f32 v{M+qg}, v{M+qg}, v{s_+qg*8+2*i}, v{s_+qg*8+2*i+1}" for i in range(4) for qg in range(2)]
    a(vm.wait({"b", "bk8"})); a(qk(8, lambda qg: "0"))
    for j in range(7, -1, -1):
        a(f"s_cmp_lt_u32 s61, {8-j}"); a(f"s_cbranch_scc1 {L(f'bp1_{(j+1)&1}')}")
        a(vm.wait({f"bk{j}"}))
        q_ = qk(j, lambda qg: "0"); m_ = mx(j + 1)
        a(q_[0]); a(q_[1]); a(q_[2]); a(q_[3]); a("s_nop 3"); a(m_)
    a.label(L("bp1_0")); a("s_nop 7"); a(mx(0)); a(f"s_branch {L('bp1_done')}")
    a.label(L("bp1_1")); a("s_nop 7"); a(mx(1))
    a.label(L("bp1_done"))
    for qg in range(2):
        a([f"v_mov_b32 v7, v{M+qg}", "s_nop 1", f"v_permlane16_swap_b32 v{M+qg}, v7", f"v_max_f32 v{M+qg}, v{M+qg}, v7",
           f"v_mov_b32 v7, v{M+qg}", "s_nop 1", f"v_permlane32_swap_b32 v{M+qg}, v7", f"v_max_f32 v{M+qg}, v{M+qg}, v7"])
    for qg in range(2):
        for r in range(4): a(f"v_sub_f32 v{CN+4*qg+r}, 0, v{M+qg}")
        for kg in range(2):
            for r in range(4):
                a(f"v_sub_f32 v{CD+(kg*2+qg)*4+r}, v{CD+(kg*2+qg)*4+r}, v{M+qg}"); a(f"v_sub_f32 v{CE+(kg*2+qg)*4+r}, v{CE+(kg*2+qg)*4+r}, v{M+qg}")
    cn = lambda qg: vr(CN + 4 * qg, 4)
    def smpv(j, nxt):
        s_ = S + 16 * (j & 1); r = []
        for i in range(16):
            if i % 4 == 0 and nxt: r.append(nxt[i // 4])
            r.append(f"v_exp_f32 v{s_+i}, v{s_+i}")
        for p in range(8): r.append(f"v_cvt_pk_bf16_f32 v{P+p}, v{s_+2*p}, v{s_+2*p+1}")
        r.append("s_nop 1")
        for qg in range(2):
            r.append(f"{MF} {vr(O+4*qg,4)}, {vr(BV+4*j,4)}, {vr(P+4*qg,4)}, {vr(O+4*qg,4)}")
            r.append(f"{MF} {vr(LL+4*qg,4)}, {vr(R.ONES,4)}, {vr(P+4*qg,4)}, {vr(LL+4*qg,4)}")
        return r
    a("s_nop 0"); a(qk(8, cn)); a(vm.wait({"bv0"})); a("s_nop 4")
    for j in range(8, 0, -1):
        a(f"s_cmp_lt_u32 s61, {9-j}"); a(f"s_cbranch_scc1 {L(f'bp2_{j}')}")
        a(smpv(j, qk(j - 1, cn)))
    a(smpv(0, None)); a(f"s_branch {L('bp2_done')}")
    for j in range(8, 0, -1):
        a.label(L(f"bp2_{j}")); a(smpv(j, None))
        if j > 1: a(f"s_branch {L('bp2_done')}")
    a.label(L("bp2_done"))
    a("s_lshl_b32 s44, s61, 15"); a("s_lshr_b32 s46, s60, 1"); a("s_lshl_b32 s46, s46, 10"); a("s_add_u32 s44, s44, s46")
    a("s_and_b32 s46, s60, 1"); a("s_lshl_b32 s46, s46, 3"); a("s_add_u32 s44, s44, s46"); a(f"s_add_u32 s44, s44, {WS_CTXB}"); a("s_add_u32 s46, s44, 16384")
    a(f"v_rcp_f32 v7, v{LL}"); a(f"v_rcp_f32 v8, v{LL+4}"); a("s_nop 0")
    for qg in range(2):
        for r in range(4): a(f"v_mul_f32 v{O+4*qg+r}, v{7+qg}, v{O+4*qg+r}")
        a(f"v_cvt_pk_bf16_f32 v{P+2*qg}, v{O+4*qg}, v{O+4*qg+1}"); a(f"v_cvt_pk_bf16_f32 v{P+2*qg+1}, v{O+4*qg+2}, v{O+4*qg+3}")
        a(f"buffer_store_dwordx2 {vr(P+2*qg,2)}, v{R.LANE16}, s[{SWS}:{SWS+3}], {'s46' if qg else 's44'} offen"); vm.issue("bst")

def gen_k2(a, name):
    R = R2
    a.raw(kernel_header(name))
    END = f"{name}_end"
    L = lambda s: f"{name}_{s}"
    a("s_cmp_ge_u32 s2, 256"); a(f"s_cbranch_scc1 {END}")
    stamp(a, 0)
    a("s_load_dwordx2 s[4:5], s[0:1], 0")
    a("s_load_dwordx2 s[8:9], s[0:1], 16")
    a("s_load_dwordx2 s[6:7], s[0:1], 88")
    a("v_lshrrev_b32 v1, 6, v0"); a("v_and_b32 v0, 63, v0")
    a("v_readfirstlane_b32 s40, v1")
    a("s_and_b32 s41, s2, 7"); a("s_lshl_b32 s41, s41, 2"); a("s_bfe_u32 s42, s2, 0x20003"); a("s_add_u32 s41, s41, s42")
    a("s_lshr_b32 s42, s2, 5")
    a("s_sub_u32 s49, 15, s42")
    a("s_lshl_b32 s43, s40, 10")
    a("s_waitcnt lgkmcnt(0)")
    SX, SWQ, SWS, SK, SV = 16, 20, 24, 28, 32
    srd(a, SX, 4, 5, 2 * MB); srd(a, SWQ, 8, 9, 4 * MB); srd(a, SWS, 6, 7, WS_END)
    a("s_lshl_b32 s44, s41, 19")
    a(f"s_add_u32 s{SK}, s6, s44"); a(f"s_addc_u32 s{SK+1}, s7, 0")
    a(f"s_add_u32 s{SV}, s{SK}, {WS_VF}"); a(f"s_addc_u32 s{SV+1}, s{SK+1}, 0")
    a("s_add_u32 s44, s49, 1"); a(f"s_lshl_b32 s{SK+2}, s44, 15"); a(f"s_mov_b32 s{SV+2}, s{SK+2}")
    a(f"s_mov_b32 s{SK+3}, 0x20000"); a(f"s_mov_b32 s{SV+3}, 0x20000")
    VXOFF, VWOFF = 56, 57
    XA = [58, 59]; XA2 = [60, 61]; WA = list(range(62, 70))
    a("v_lshrrev_b32 v11, 4, v0")
    a("s_and_b32 s44, s40, 1"); a("s_lshl_b32 s44, s44, 2")
    a("v_add_u32 v7, s44, v11")
    a("v_and_b32 v8, 7, v0"); a("v_xor_b32 v7, v7, v8"); a("v_lshlrev_b32 v7, 4, v7")
    a("v_lshrrev_b32 v8, 3, v0"); a("v_lshlrev_b32 v8, 10, v8")
    a("v_add_u32 v7, v7, v8"); a("s_lshl_b32 s44, s40, 13"); a(f"v_add_u32 v{VXOFF}, s44, v7")
    a("s_bfe_u32 s44, s40, 0x10001"); a("s_lshl_b32 s44, s44, 2")
    a("v_or_b32 v7, s44, v11"); a("v_lshlrev_b32 v7, 1, v7")
    a("v_and_b32 v8, 15, v0"); a("v_xor_b32 v7, v7, v8"); a("v_lshlrev_b32 v7, 4, v7")
    a("s_lshl_b32 s44, s40, 2"); a("v_add_u32 v9, s44, v11"); a("v_lshlrev_b32 v9, 13, v9")
    a("v_add_u32 v7, v7, v9"); a("s_lshl_b32 s44, s41, 8"); a(f"v_add_u32 v{VWOFF}, s44, v7")
    a("s_lshl_b32 s45, s49, 17")
    a("s_lshl_b32 s47, s42, 17")
    a(f"v_lshlrev_b32 v{R.LANE16}, 4, v0")
    XS = [0, 32768, 131072]; WSL = [65536, 81920, 98304]
    vm = VM(a)
    def q_dma(st):
        r = []
        for m in range(4):
            r.append(dma(43, XS[st % 3] + m * 8192, VXOFF, SX, ([f"s_add_u32 s46, s{45 if m < 2 else 47}, {(m&1)*65536 + st*128}"], "s46")))
        for hf in range(2):
            r.append(dma(43, WSL[st % 3] + hf * 8192, VWOFF, SWQ, ([f"s_mov_b32 s46, {(2*st+hf)*262144}"], "s46")))
        return r
    def ring_pre(srd_, lds, pair):
        return [[f"s_add_u32 m0, s48, {lds}", f"s_add_u32 s46, s48, {pair*16384}",
                 f"buffer_load_dwordx4 v{R.LANE16}, s[{srd_}:{srd_+3}], s46 offen lds"],
                [f"buffer_load_dwordx4 v{R.LANE16}, s[{srd_}:{srd_+3}], s46 offen offset:1024 lds"]]
    a("s_lshl_b32 s48, s40, 11")
    a("v_and_b32 v8, 15, v0"); a(f"v_lshlrev_b32 v9, 2, v11"); a(f"v_sub_u32 v{R.DQ}, v8, v9")
    def q_first():
        for st in range(3):
            for it in q_dma(st): a(it); vm.issue(f"q{st}")
    gen_battn(a, name, SWS, vm, q_first)
    a("s_sub_u32 s44, 7, s40"); a("s_cmp_lt_u32 s40, 4")
    a("s_cselect_b32 s50, s40, s44")
    a("s_cselect_b32 s51, s49, s42")
    a("s_cselect_b32 s44, 0, 128"); a("s_lshl_b32 s46, s50, 5"); a("s_add_u32 s44, s44, s46")
    a("s_lshl_b32 s52, s51, 2"); a("s_add_u32 s52, s52, s50")
    a("s_lshl_b32 s53, s49, 1"); a("s_add_u32 s53, s53, 2")
    a("v_and_b32 v8, 15, v0")
    a("v_add_u32 v7, s44, v8"); a("v_lshlrev_b32 v7, 7, v7")
    a("v_lshrrev_b32 v9, 1, v8"); a("v_xor_b32 v9, v9, v11"); a("v_lshlrev_b32 v9, 4, v9")
    a(f"v_add_u32 v{XA[0]}, v7, v9"); a(f"v_xor_b32 v{XA[1]}, 64, v{XA[0]}")
    a(f"v_add_u32 v{XA2[0]}, {XS[2]}, v{XA[0]}"); a(f"v_add_u32 v{XA2[1]}, {XS[2]}, v{XA[1]}")
    a("v_lshrrev_b32 v9, 2, v8")
    a("v_lshlrev_b32 v7, 3, v11"); a("v_add_u32 v7, v7, v9"); a("v_lshlrev_b32 v7, 8, v7")
    a("v_and_b32 v10, 1, v11"); a("v_lshlrev_b32 v10, 2, v10"); a("v_or_b32 v9, v9, v10"); a("v_lshlrev_b32 v9, 5, v9")
    a("v_and_b32 v10, 3, v0"); a("v_lshlrev_b32 v10, 3, v10")
    a("v_add3_u32 v7, v7, v9, v10"); a(f"v_add_u32 v{WA[0]}, {WSL[0]}, v7")
    for n16 in range(1, 8): a(f"v_xor_b32 v{WA[n16]}, {32*n16}, v{WA[0]}")
    a(f"v_add_u32 v{R.LANEK}, 98304, v{R.LANE16}")
    WF, XF, ACC = R.KF, R.VF, R.O
    def xread(n, qg):
        sl = (n // 2) % 3; ks = n & 1
        reg = XA2[ks] if sl == 2 else XA[ks]; off = (0 if sl == 2 else XS[sl]) + qg * 2048
        return f"ds_read_b128 {vr(XF + 8*(n&1) + 4*qg, 4)}, v{reg} offset:{off}"
    def wread(n, dk, sec):
        return f"ds_read_b64_tr_b16 {vr(WF+4*dk+2*sec,2)}, v{WA[dk]} offset:{((n//2)%3)*16384 + (n&1)*8192 + sec*1024}"
    a(vm.wait({"q0"})); a("s_barrier")
    stamp(a, 1)
    a(xread(0, 0)); a(xread(0, 1))
    for dk in range(8): a(wread(0, dk, 0)); a(wread(0, dk, 1))
    for n in range(16):
        groups = [[] for _ in range(8)]
        last = (n == 15)
        newstage = (n & 1) == 1 and not last
        if not last:
            lag = 2 if newstage else 0
            if newstage:
                s_ = (n + 1) // 2
                groups[lag] += ["s_waitcnt lgkmcnt(0)"] + vm.wait({f"q{s_}"}) + ["s_barrier"]
            groups[lag] += [xread(n + 1, 0), xread(n + 1, 1)]
            for dk in range(8): groups[max(dk, lag)] += [wread(n + 1, dk, 0), wread(n + 1, dk, 1)]
            if newstage:
                if s_ + 2 <= 7: items = [(it, f"q{s_+2}") for it in q_dma(s_ + 2)]
                elif s_ == 6: items = [(it, f"k{p}") for p in range(3) for it in ring_pre(SK, 98304 + p * 16384, p)]
                else: items = [(it, f"v{p}") for p in range(2) for it in ring_pre(SV, p * 16384, p)]
                for it, tag in items: vm.issue(tag)
                spread(groups, [it for it, _ in items], 3, 8)
        prev_new = (n & 1) == 0 and n > 0
        for dk in range(8):
            if dk % 2 == 0:
                if n == 0 or last or newstage: cnt = None
                if n == 0: w_ = 12 - 2 * dk + sum(sum(1 for x in groups[j] if x.startswith("ds_")) for j in range(dk))
                else: w_ = 12 - 2 * dk + sum(sum(1 for x in groups[j] if x.startswith("ds_")) for j in range(dk))
                if not (newstage and dk > lag): a(f"s_waitcnt lgkmcnt({min(w_, 15)})")
            for qg in range(2):
                acc = vr(ACC + (qg * 8 + dk) * 4, 4)
                a(f"{MF} {acc}, {vr(WF+4*dk,4)}, {vr(XF+8*(n&1)+4*qg,4)}, {'0' if n == 0 else acc}")
            a(groups[dk])
    stamp(a, 2)
    a(f"s_mov_b32 s44, {f32bits(QSCALE):#x}")
    a(vm.wait({"k0"})); a("s_barrier")
    for f in range(8): a(f"ds_read_b128 {vr(R.KF+4*f,4)}, v{R.LANEK} offset:{f*1024}")
    for qg in range(2):
        for dk in range(8):
            b = ACC + (qg * 8 + dk) * 4
            for r in range(4): a(f"v_mul_f32 v{b+r}, s44, v{b+r}")
            q = R.Q + (qg * 4 + dk // 2) * 4 + (dk & 1) * 2
            a(f"v_cvt_pk_bf16_f32 v{q}, v{b}, v{b+1}"); a(f"v_cvt_pk_bf16_f32 v{q+1}, v{b+2}, v{b+3}")
    for i in range(16): a(f"v_mov_b32 v{R.C+i}, 0")
    for i in range(4): a(f"v_mov_b32 v{R.ONES+i}, 0x3f803f80")
    def mask_c():
        r = [f"v_mov_b32 v{R.T0}, {NEGBIG:#x}"]
        for j in range(4):
            r += [f"v_cmp_gt_i32 vcc, {j}, v{R.DQ}", f"v_mov_b32 v{R.C+8+j}, v{R.T0}", "s_nop 0",
                  f"v_cndmask_b32 v{R.C+j}, v{R.C+j}, v{R.T0}, vcc", f"v_cndmask_b32 v{R.C+12+j}, v{R.C+12+j}, v{R.T0}, vcc"]
        return r + ["s_nop 1"]
    a("s_cmp_lg_u32 s52, 0"); a(f"s_cbranch_scc1 {L('nomask0')}")
    a(mask_c())
    a.label(L("nomask0"))
    a("s_waitcnt lgkmcnt(0)")
    for kg in range(2):
        for qg in range(2):
            for ds in range(4):
                s_ = vr(R.S + qg * 8 + kg * 4, 4)
                c = vr(R.C + (kg * 2 + qg) * 4, 4) if ds == 0 else s_
                a(f"{MF} {s_}, {vr(R.KF+(kg*4+ds)*4,4)}, {vr(R.Q+(qg*4+ds)*4,4)}, {c}")
                if qg == 1: a(f"ds_read_b128 {vr(R.KF+(kg*4+ds)*4,4)}, v{R.LANEK} offset:{8192+(kg*4+ds)*1024}")
    for i in range(64): a(f"v_mov_b32 v{R.O+i}, 0")
    for i in range(8): a(f"v_mov_b32 v{R.L+i}, 0")
    def rowmax(dst, src, tmp):
        return [f"v_max3_f32 v{dst}, v{src}, v{src+1}, v{src+2}", f"v_max3_f32 v{dst}, v{dst}, v{src+3}, v{src+4}",
                f"v_max3_f32 v{dst}, v{dst}, v{src+5}, v{src+6}", f"v_max_f32 v{dst}, v{dst}, v{src+7}",
                f"v_mov_b32 v{tmp}, v{dst}", "s_nop 1", f"v_permlane16_swap_b32 v{dst}, v{tmp}", f"v_max_f32 v{dst}, v{dst}, v{tmp}",
                f"v_mov_b32 v{tmp}, v{dst}", "s_nop 1", f"v_permlane32_swap_b32 v{dst}, v{tmp}", f"v_max_f32 v{dst}, v{dst}, v{tmp}"]
    for qg in range(2):
        a(rowmax(7 + qg, R.S + qg * 8, 9))
    for qg in range(2):
        for i in range(8): a(f"v_sub_f32 v{R.S+qg*8+i}, v{R.S+qg*8+i}, v{7+qg}")
        for kg in range(2):
            for r in range(4): a(f"v_sub_f32 v{R.C+(kg*2+qg)*4+r}, 0, v{7+qg}")
    a("s_mov_b32 s54, 0"); a("s_mov_b32 s55, 0"); a("s_mov_b32 s56, 0xc000")
    a("s_and_b32 s59, s40, 3"); a("s_lshl_b32 s59, s59, 12")
    a(f"s_add_u32 s57, s59, {3*16384}"); a(f"s_add_u32 s58, s59, {2*16384}")
    a("s_mov_b32 s60, s52")
    a("s_waitcnt vmcnt(0)")
    stamp(a, 3)
    def addr_upd():
        return [["s_add_u32 s55, s55, 0x4000", "s_and_b32 s55, s55, 0xffff", f"v_add_u32 v{R.KADDR}, s55, v{R.LANEK}"],
                ["s_add_u32 s56, s56, 0x4000", "s_and_b32 s56, s56, 0xffff", f"v_add_u32 v{R.VADDR}, s56, v{R.LANE16}"]]
    def ring_dma():
        r = []
        if "nodma" in EXP: return [[] for _ in range(8)]
        for (srd_, slot, g, base) in ((SK, 55, 57, 98304), (SV, 56, 58, 0)):
            for j in range(4):
                it = []
                if j == 0: it += [f"s_xor_b32 s46, s{slot}, 0x8000", "s_add_u32 s46, s46, s59", f"s_add_u32 m0, s46, {base}", "s_nop 0"]
                it.append(f"buffer_load_dwordx4 v{R.LANE16}, s[{srd_}:{srd_+3}], s{g} offen offset:{j*1024} lds")
                if j == 3: it.append(f"s_add_u32 s{g}, s{g}, 0x4000")
                r.append(it)
        return r
    flat = lambda l: [x for it in l for x in it]
    cnt = [0]
    def sync_generic(vmn=8):
        cnt[0] += 1; lb = L(f"sy{cnt[0]}")
        return flat(addr_upd()) + [f"s_waitcnt vmcnt({vmn})", "s_barrier", "s_add_u32 s54, s54, 1",
                "s_cmp_lt_u32 s40, 4", f"s_cbranch_scc1 {lb}"] + flat(ring_dma()) + [f"{lb}:"]
    def emit(lst):
        for x in lst:
            if x.endswith(":"): a.label(x[:-1])
            else: a(x)
    emit(sync_generic())
    a("s_cmp_lg_u32 s60, 1"); a(f"s_cbranch_scc1 {L('nomask1')}"); a(mask_c()); a.label(L("nomask1"))
    a(attn_step(0, pv=False))
    a(f"s_branch {L('odd')}")
    for role in ("long", "short"):
        a.raw(".p2align 6")
        a.label(L(f"hot_{role}"))
        head = (["s_waitcnt vmcnt(8)"] if role == "short" and "novm" not in EXP else []) + ["s_barrier"]
        au = addr_upd()
        d = ring_dma() if role == "short" else []
        pre = flat(au)
        a(pre)
        a(attn_step(0, head=head, extra=d[:4] + [["s_add_u32 s54, s54, 1"]]))
        a(attn_step(1, extra=d[4:] + [["s_sub_u32 s60, s60, 2"]]))
        a("s_cmp_ge_i32 s60, 3"); a(f"s_cbranch_scc1 {L(f'hot_{role}')}")
        a(f"s_branch {L('even_gen')}")
    a.label(L("even"))
    a("s_cmp_lt_i32 s60, 3"); a(f"s_cbranch_scc1 {L('even_gen')}")
    a("s_cmp_lt_u32 s40, 4"); a(f"s_cbranch_scc1 {L('hot_long')}"); a(f"s_branch {L('hot_short')}")
    a.label(L("even_gen"))
    a("s_cmp_lt_i32 s60, 0"); a(f"s_cbranch_scc1 {L('e_tail2')}")
    emit(sync_generic())
    a("s_cmp_eq_u32 s60, 0"); a(f"s_cbranch_scc1 {L('e_tail1')}")
    a("s_cmp_lg_u32 s60, 1"); a(f"s_cbranch_scc1 {L('nomask2')}"); a(mask_c()); a.label(L("nomask2"))
    a(attn_step(0))
    a.label(L("odd"))
    a("s_sub_u32 s60, s60, 1")
    a("s_cmp_lt_i32 s60, 0"); a(f"s_cbranch_scc1 {L('o_tail2')}")
    a("s_cmp_eq_u32 s60, 0"); a(f"s_cbranch_scc1 {L('o_tail1')}")
    a("s_cmp_lg_u32 s60, 1"); a(f"s_cbranch_scc1 {L('nomask3')}"); a(mask_c()); a.label(L("nomask3"))
    a(attn_step(1))
    a("s_sub_u32 s60, s60, 1"); a(f"s_branch {L('even')}")
    a.label(L("o_tail1"))
    a(attn_step(1, qk=False))
    a.label(L("e_tail2"))
    a("s_cmp_ge_u32 s54, s53"); a(f"s_cbranch_scc1 {L('e_tail2b')}")
    emit(sync_generic())
    a.label(L("e_tail2b"))
    a(attn_step(0, qk=False, sm=False))
    a(f"s_branch {L('fin')}")
    a.label(L("e_tail1"))
    a(attn_step(0, qk=False))
    a.label(L("o_tail2"))
    a(attn_step(1, qk=False, sm=False))
    a.label(L("fin"))
    stamp(a, 4)
    a("s_cmp_ge_u32 s54, s53"); a(f"s_cbranch_scc1 {L('epi')}")
    emit(sync_generic())
    a.label(L("epi"))
    a("s_nop 7")
    a("v_mov_b32 v8, 0"); a("v_mov_b32 v9, 0"); a("v_mov_b32 v10, 0"); a("v_mov_b32 v11, 0")
    for i in range(0, 64, 2): a(f"v_pk_fma_f32 v[8:9], v[{R.O+i}:{R.O+i+1}], v[10:11], v[8:9]")
    a(f"v_max_f32 v7, v{R.L}, v{R.L+4}"); a("v_add_f32 v8, v8, v9"); a(f"v_add_f32 v9, v{R.L}, v{R.L+4}"); a("v_add_f32 v8, v8, v9")
    a(f"s_mov_b32 s44, {f32bits(2.0**100):#x}")
    a("v_cmp_nlt_f32 vcc, v8, s44" if False else "v_cmp_ngt_f32 vcc, s44, v8")
    a("s_nop 4")
    a(f"s_cbranch_vccnz {L('slow')}")
    a.label(L("store"))
    a(f"v_rcp_f32 v7, v{R.L}"); a(f"v_rcp_f32 v8, v{R.L+4}")
    a("s_lshl_b32 s44, s52, 1"); a("s_lshl_b32 s44, s44, 17"); a("s_lshl_b32 s46, s41, 12"); a("s_add_u32 s44, s44, s46"); a(f"s_add_u32 s44, s44, {WS_CTX}")
    for qg in range(2):
        for p in range(4):
            t = R.S + (qg * 4 + p) * 4
            for e in range(2):
                b = R.O + ((2 * p + e) * 2 + qg) * 4
                for r in range(4): a(f"v_mul_f32 v{b+r}, v{7+qg}, v{b+r}")
                a(f"v_cvt_pk_bf16_f32 v{t+2*e}, v{b}, v{b+1}"); a(f"v_cvt_pk_bf16_f32 v{t+2*e+1}, v{b+2}, v{b+3}")
            a(f"buffer_store_dwordx4 {vr(t,4)}, v{R.LANE16}, s[{SWS}:{SWS+3}], s44 offen offset:{p*1024}")
        if qg == 0: a(f"s_add_u32 s44, s44, {128*1024}")
    stamp(a, 5)
    for rep in range(2):
        a("s_cmp_ge_u32 s54, s53"); a(f"s_cbranch_scc1 {L('done')}")
        emit(sync_generic(16))
    a.label(L("idle"))
    a("s_cmp_ge_u32 s54, s53"); a(f"s_cbranch_scc1 {L('done')}")
    emit(sync_generic())
    a(f"s_branch {L('idle')}")
    a.label(L("done"))
    if STAMPS: a("s_waitcnt vmcnt(0)")
    stamp(a, 6)
    stamp_dump(a, 7, SWS, 40, 1)
    a.label(END)
    a("s_endpgm")
    a.label(L("slow"))
    a("s_waitcnt vmcnt(0) lgkmcnt(0)")
    M = [248, 249]; TM = [250, 251]; AL = [252, 253]
    for i in range(64): a(f"v_mov_b32 v{R.O+i}, 0")
    for i in range(8): a(f"v_mov_b32 v{R.L+i}, 0")
    for i in range(16): a(f"v_mov_b32 v{R.C+i}, 0")
    a(f"v_mov_b32 v{M[0]}, {NEGBIG:#x}"); a(f"v_mov_b32 v{M[1]}, {NEGBIG:#x}")
    a("s_mov_b32 s61, 0")
    a.label(L("slow_loop"))
    a("s_lshl_b32 s44, s61, 13"); a("s_add_u32 s46, s44, 4096")
    for f in range(8): a(f"buffer_load_dwordx4 {vr(R.KF+4*f,4)}, v{R.LANE16}, s[{SK}:{SK+3}], {'s44' if f < 4 else 's46'} offen offset:{(f&3)*1024}")
    for f in range(8): a(f"buffer_load_dwordx4 {vr(R.VF+4*f,4)}, v{R.LANE16}, s[{SV}:{SV+3}], {'s44' if f < 4 else 's46'} offen offset:{(f&3)*1024}")
    a("s_cmp_lg_u32 s61, s52"); a(f"s_cbranch_scc1 {L('slow_nm')}"); a(mask_c()); a.label(L("slow_nm"))
    a("s_waitcnt vmcnt(0)")
    for kg in range(2):
        for qg in range(2):
            for ds in range(4):
                s_ = vr(R.S + qg * 8 + kg * 4, 4)
                c = vr(R.C + (kg * 2 + qg) * 4, 4) if ds == 0 else s_
                a(f"{MF} {s_}, {vr(R.KF+(kg*4+ds)*4,4)}, {vr(R.Q+(qg*4+ds)*4,4)}, {c}")
    a("s_nop 7")
    for qg in range(2):
        a(rowmax(TM[qg], R.S + qg * 8, 9))
        a(f"v_max_f32 v{TM[qg]}, v{TM[qg]}, v{M[qg]}")
        a(f"v_sub_f32 v{AL[qg]}, v{M[qg]}, v{TM[qg]}"); a(f"v_exp_f32 v{AL[qg]}, v{AL[qg]}"); a(f"v_mov_b32 v{M[qg]}, v{TM[qg]}")
        for i in range(8): a(f"v_sub_f32 v{R.S+qg*8+i}, v{R.S+qg*8+i}, v{TM[qg]}")
        for i in range(8): a(f"v_exp_f32 v{R.S+qg*8+i}, v{R.S+qg*8+i}")
        for dt in range(8):
            for r in range(4): a(f"v_mul_f32 v{R.O+(dt*2+qg)*4+r}, v{AL[qg]}, v{R.O+(dt*2+qg)*4+r}")
        for r in range(4): a(f"v_mul_f32 v{R.L+qg*4+r}, v{AL[qg]}, v{R.L+qg*4+r}")
        for p in range(4): a(f"v_cvt_pk_bf16_f32 v{R.P+qg*4+p}, v{R.S+qg*8+2*p}, v{R.S+qg*8+2*p+1}")
    a("s_nop 1")
    for dt in range(8):
        for qg in range(2):
            o = vr(R.O + (dt * 2 + qg) * 4, 4)
            a(f"{MF} {o}, {vr(R.VF+dt*4,4)}, {vr(R.P+qg*4,4)}, {o}")
    for qg in range(2):
        l = vr(R.L + qg * 4, 4); a(f"{MF} {l}, {vr(R.ONES,4)}, {vr(R.P+qg*4,4)}, {l}")
    a("s_nop 7")
    a("s_add_u32 s61, s61, 1"); a("s_cmp_le_u32 s61, s52"); a(f"s_cbranch_scc1 {L('slow_loop')}")
    a(f"s_branch {L('store')}")

def gen_k3(a, name):
    a.raw(kernel_header(name))
    END = f"{name}_end"
    a("s_cmp_ge_u32 s2, 256"); a(f"s_cbranch_scc1 {END}")
    stamp(a, 0)
    a("s_load_dwordx2 s[4:5], s[0:1], 72")
    a("s_load_dwordx2 s[6:7], s[0:1], 88")
    a("v_lshrrev_b32 v1, 6, v0"); a("v_and_b32 v0, 63, v0")
    a("v_readfirstlane_b32 s40, v1")
    a("s_and_b32 s41, s2, 7"); a("s_lshl_b32 s41, s41, 2"); a("s_bfe_u32 s42, s2, 0x20003"); a("s_add_u32 s41, s41, s42")
    a("s_lshr_b32 s42, s2, 5")
    a("v_lshlrev_b32 v1, 4, v0")
    for i in range(1, 4): a(f"v_add_u32 v{1+i}, {i*131072}, v1")
    for i in range(1, 4): a(f"v_add_u32 v{4+i}, {i*16384}, v1")
    VA = [1, 2, 3, 4]; VB = [1, 5, 6, 7]
    a("s_lshl_b32 s44, s41, 19"); a("s_lshl_b32 s46, s40, 15"); a("s_add_u32 s44, s44, s46"); a(f"s_add_u32 s44, s44, {WS_CTX}")
    a("s_lshl_b32 s45, s42, 19"); a("s_add_u32 s45, s45, s46"); a(f"s_add_u32 s45, s45, {WS_WOF}")
    a("s_lshl_b32 s46, s40, 12")
    a("s_lshl_b32 s47, s41, 16"); a("s_add_u32 s47, s47, s46"); a(f"s_add_u32 s47, s47, {WS_CTXB}")
    a("s_lshl_b32 s48, s42, 16"); a("s_add_u32 s48, s48, s46"); a(f"s_add_u32 s48, s48, {WS_WOBF}")
    a("s_waitcnt lgkmcnt(0)")
    SO, SWS = 16, 20
    srd(a, SO, 4, 5, 4 * MB); srd(a, SWS, 6, 7, WS_END)
    DEPTH = 7; RB = 32
    vm = VM(a)
    NS = 36
    def loads(n):
        b = RB + 32 * (n % DEPTH); r = []
        isb = n < 4; ks = n if isb else n - 4
        vo = VB if isb else VA
        for i in range(4):
            for (which, sreg) in ((0, 47 if isb else 44), (1, 48 if isb else 45)):
                r.append(f"buffer_load_dwordx4 {vr(b+16*which+4*i,4)}, v{vo[i]}, s[{SWS}:{SWS+3}], s{sreg} offen offset:{(ks&3)*1024}")
        if not isb and ks & 3 == 3: r += ["s_add_u32 s44, s44, 4096", "s_add_u32 s45, s45, 4096"]
        return r
    def iss(lst, tag):
        for x in lst:
            if x.startswith("buffer"): vm.issue(tag)
    for n in range(DEPTH):
        l = loads(n); a(l); iss(l, n)
    for n in range(NS):
        b = RB + 32 * (n % DEPTH); isb = n < 4
        a(vm.wait({n}))
        if n == 0: stamp(a, 1)
        for c in range(4):
            for t in range(4):
                acc = vr((64 if isb else 0) + (c * 4 + t) * 4, 4, "a")
                a(f"{MF} {acc}, {vr(b+16+4*c,4)}, {vr(b+4*t,4)}, {'0' if n in (0, 4) else acc}")
        if n + DEPTH < NS:
            l = loads(n + DEPTH); a(l); iss(l, n + DEPTH)
    stamp(a, 2)
    a("v_lshrrev_b32 v8, 4, v0"); a("v_and_b32 v9, 15, v0")
    a("v_lshrrev_b32 v10, 1, v8"); a("v_lshl_add_u32 v10, v10, 2, v9")
    a("s_lshl_b32 s44, s40, 14")
    for e in range(2):
        a(f"v_add_u32 v11, {8*e}, v10"); a("v_and_b32 v11, 15, v11"); a("v_lshl_add_u32 v11, v8, 4, v11"); a("v_lshlrev_b32 v11, 4, v11")
        a(f"v_add_u32 v{12+e}, s44, v11"); a(f"v_add_u32 v{14+e}, 0x10000, v{12+e}")
    a("s_nop 1")
    for mat in range(2):
        for c in range(4):
            for t in range(4):
                a(f"ds_write_b128 v{12+2*mat+(c&1)}, {vr(64*mat+(c*4+t)*4,4,'a')} offset:{(c*4+t)*1024}")
    a("v_lshrrev_b32 v8, 3, v0"); a("v_and_b32 v9, 7, v0")
    a("v_and_b32 v10, 3, v9"); a("v_lshl_add_u32 v10, v10, 2, v8")
    a("v_lshrrev_b32 v11, 1, v9"); a("v_lshlrev_b32 v11, 12, v11")
    a("v_and_b32 v16, 1, v9"); a("v_lshl_add_u32 v11, v16, 9, v11")
    a("s_lshl_b32 s44, s40, 10"); a("v_add_u32 v11, s44, v11")
    for ps in range(2):
        a(f"v_add_u32 v16, {8*ps}, v10"); a("v_and_b32 v16, 15, v16"); a(f"v_lshl_add_u32 v{17+ps}, v16, 4, v11"); a(f"v_add_u32 v{19+ps}, 0x10000, v{17+ps}")
    a("v_lshlrev_b32 v21, 11, v8"); a("v_lshl_add_u32 v21, v9, 4, v21")
    a("s_lshl_b32 s44, s41, 2"); a("s_add_u32 s44, s44, s40"); a("s_lshl_b32 s44, s44, 15"); a("s_lshl_b32 s46, s42, 7"); a("s_add_u32 s44, s44, s46")
    a("s_add_u32 s46, s44, 16384")
    a("s_waitcnt lgkmcnt(0)"); a("s_barrier")
    for mat in range(2):
        for ps in range(2):
            b = 32 + (mat * 2 + ps) * 32
            for wv in range(4):
                for hf in range(2):
                    a(f"ds_read_b128 {vr(b+wv*8+hf*4,4)}, v{17+2*mat+ps} offset:{wv*16384 + hf*256}")
        for ps in range(2):
            b = 32 + (mat * 2 + ps) * 32
            a(f"s_waitcnt lgkmcnt({8 - 8*ps})")
            for i in range(8): a(f"v_add_f32 v{b+i}, v{b+i}, v{b+8+i}"); a(f"v_add_f32 v{b+16+i}, v{b+16+i}, v{b+24+i}")
            for i in range(8): a(f"v_add_f32 v{b+i}, v{b+i}, v{b+16+i}")
            for i in range(4): a(f"v_cvt_pk_bf16_f32 v{b+8+i}, v{b+2*i}, v{b+2*i+1}")
            a(f"buffer_store_dwordx4 {vr(b+8,4)}, v21, s[{SO}:{SO+3}], {'s46' if ps else 's44'} offen offset:{mat*1024}")
    stamp(a, 3)
    if STAMPS: a("s_waitcnt vmcnt(0)")
    stamp(a, 4)
    stamp_dump(a, 5, SWS, 40, 2)
    a.label(END)
    a("s_endpgm")

def build(kernels, path):
    hdr = open("cdna_kernels/" + NAME + ".s.ref").read().split("; Override")[0].rstrip("\n").split("\n")
    a = Asm()
    desc = ['.section .rodata,"a"']
    for (name, fn, grid, block, lds, vg, acc) in kernels:
        hdr.append(f"; @launch kernel={name} grid=({grid},1,1) block=({block},1,1) lds={lds}")
        fn(a, name)
        desc.append(".p2align 6"); desc.append(kernel_desc(name, vg, acc))
    txt = "\n".join(hdr) + '\n.amdgcn_target "amdgcn-amd-amdhsa--gfx950"\n.text\n' + a.text() + "\n".join(desc) + "\n"
    open(path, "w").write(txt)

if __name__ == "__main__":
    out = sys.argv[1] if len(sys.argv) > 1 else "k.s"
    STAMPS = "stamps" in sys.argv
    EXP = set(x[2:] for x in sys.argv if x.startswith("x:"))
    build([("kvproj_kernel", gen_k1, 256, 512, 163840, 256, 256),
           ("attn_kernel", gen_k2, 256, 512, 163840, 256, 256),
           ("oproj_kernel", gen_k3, 256, 256, 131072, 384, 256)], out)
```
